```python
import torch

def _softmax(x, axis=-1):
    return torch.softmax(x, dim=axis)
def _gelu(x):
    return torch.nn.functional.gelu(x, approximate="tanh")
def _silu(x):
    return torch.nn.functional.silu(x)
def _sigmoid(x):
    return torch.sigmoid(x)
def _layernorm(x, axis=-1, eps=1e-5):
    m = x.mean(dim=axis, keepdim=True)
    v = x.var(dim=axis, keepdim=True, unbiased=False)
    return (x - m) / torch.sqrt(v + eps)
def _scatter_add(tgt, idx, src, axis=0):
    return tgt.clone().index_add_(axis, idx, src)
def _segment_sum(src, seg, n):
    out = torch.zeros((n,) + src.shape[1:], dtype=src.dtype)
    return out.index_add_(0, seg, src)
def _pad(x, pw):
    flat = tuple(v for pair in reversed(pw) for v in pair)
    return torch.nn.functional.pad(x, flat)

kernel_name = 'gated_mix__ssm_conv_s4d__spectral_gfnet__prompt'

def setup_inputs():

    _w = (lambda a: (lambda t: t.to(torch.bfloat16) if t.is_floating_point() else t)(torch.as_tensor(a)))
    def _A_setup():
        Bsz, L, D, N = 1, 2048, 512, 128
        return {
            "u": _w((lambda *s: torch.randn(*s, dtype=torch.bfloat16) * 0.05)(Bsz, L, D)),
            "log_A_real": _w((lambda *s: torch.randn(*s, dtype=torch.bfloat16) * 3.2)(D, N) * 0.5),
            "A_imag": _w((lambda *s: torch.randn(*s, dtype=torch.bfloat16) * 0.05)(D, N) * 3.14),
            "C_real": _w((lambda *s: torch.randn(*s, dtype=torch.bfloat16) * 0.1)(D, N) / N ** 0.5),
            "C_imag": _w((lambda *s: torch.randn(*s, dtype=torch.bfloat16) * 0.1)(D, N) / N ** 0.5),
            "log_dt": _w((lambda *s: torch.randn(*s, dtype=torch.bfloat16) * 0.05)(D) * 0.5 - 4.0),
            "D_skip": _w((lambda *s: torch.randn(*s, dtype=torch.bfloat16) * 0.05)(D)),
        }
    _A_in = _A_setup()

    def _B_setup():
        B, S, D = 1, 2048, 512
        Df = D // 2 + 1
        return {
            "x": _w((lambda *s: torch.randn(*s, dtype=torch.bfloat16) * 0.05)(B, S, D)),
            "w_r": _w((lambda *s: torch.randn(*s, dtype=torch.bfloat16) * 1.6)(S, Df) * 0.02),
            "w_i": _w((lambda *s: torch.randn(*s, dtype=torch.bfloat16) * 1.6)(S, Df) * 0.02),
        }
    _B_in = _B_setup()

    return {
        "A_u": _A_in["u"],
        "A_log_A_real": _A_in["log_A_real"],
        "A_A_imag": _A_in["A_imag"],
        "A_C_real": _A_in["C_real"],
        "A_C_imag": _A_in["C_imag"],
        "A_log_dt": _A_in["log_dt"],
        "A_D_skip": _A_in["D_skip"],
        "B_x": _B_in["x"],
        "B_w_r": _B_in["w_r"],
        "B_w_i": _B_in["w_i"],
        "gate_w": _w((lambda *s: torch.randn(*s, dtype=torch.bfloat16) * 0.05)(512) * 16.0),
    }

def reference(A_u, A_log_A_real, A_A_imag, A_C_real, A_C_imag, A_log_dt, A_D_skip, B_x, B_w_r, B_w_i, gate_w):
    def _A_ref(u, log_A_real, A_imag, C_real, C_imag, log_dt, D_skip):
        L = u.shape[1]
        dt = torch.exp(log_dt)
        A = -torch.exp(log_A_real) + 1j * A_imag
        C = (C_real + 1j * C_imag) * dt[:, None]
        pos = (lambda x, dt: x.to(dt))(torch.arange(L), log_dt.dtype)
        P = torch.exp((A * dt[:, None])[:, :, None] * pos[None, None, :])
        K = 2.0 * torch.einsum("dn,dnl->dl", C, P).real
        L2 = 2 * L
        u_t = (lambda x, *d: x.permute(*d))(u, 0, 2, 1)
        Kf = (lambda x, *a, **k: torch.fft.rfft(x.float(), *a, **k))(K, L2)
        Uf = (lambda x, *a, **k: torch.fft.rfft(x.float(), *a, **k))(u_t, L2)
        y = (lambda x, *a, **k: torch.fft.irfft(x, *a, **k).to(torch.bfloat16))(Uf * Kf[None, :, :], L2)[:, :, :L]
        y = (lambda x, *d: x.permute(*d))(y, 0, 2, 1)
        return y + u * D_skip[None, None, :]

    def _B_ref(x, w_r, w_i):
        B, S, D = x.shape
        X = (lambda x, axes=(-2,-1): torch.fft.rfft2(x.float(), dim=axes))(x, axes=(-2, -1))
        W = w_r + 1j * w_i
        X = X * W
        y = (lambda x, s, axes=(-2,-1): torch.fft.irfft2(x, s=s, dim=axes).to(torch.bfloat16))(X, (S, D), axes=(-2, -1))
        return y

    x = A_u
    g = _sigmoid((x * gate_w).sum(-1, keepdims=True))
    a = _A_ref(x, A_log_A_real, A_A_imag, A_C_real, A_C_imag, A_log_dt, A_D_skip)
    b = _B_ref(x, B_w_r, B_w_i)
    return g * a + (1 - g) * b
```

```python
import re, sys
src=open(sys.argv[1]).read()
wgs=[int(x) for x in sys.argv[3].split(",")]
names=re.findall(r"; @launch kernel=(\w+)", src)
N=len(names)
for i,nm in enumerate(names):
    head="%s:\n"%nm
    a=src.index(head)+len(head)
    b=src.index(".globl", a) if ".globl" in src[a:] else src.index(".section .rodata", a)
    body=src[a:b]
    pre="    s_memrealtime s[90:91]\n    s_memtime s[92:93]\n    s_load_dwordx4 s[76:79], s[0:1], 96\n    s_mov_b32 s89, s2\n    v_readfirstlane_b32 s88, v0\n    s_waitcnt lgkmcnt(0)\n"
    cnt=[0]
    def rep(m):
        cnt[0]+=1
        L="LS_%d_%d"%(i,cnt[0])
        t=("    s_waitcnt vmcnt(0)\n    s_cmp_lg_u32 s89, %d\n    s_cbranch_scc1 %s\n    s_cmp_lg_u32 s88, 0\n    s_cbranch_scc1 %s\n"
                "    s_memrealtime s[96:97]\n    s_memtime s[98:99]\n    s_waitcnt lgkmcnt(0)\n"
                "    s_add_u32 s84, s78, 0x1f00000\n    s_addc_u32 s85, s79, 0\n    s_mov_b32 s86, 64\n    s_mov_b32 s87, 0x20000\n"
                "    s_mov_b32 s80, s76\n    s_mov_b32 s81, s77\n    s_mov_b32 s82, 64\n    s_mov_b32 s83, 0x20000\n"
                "    s_mov_b64 exec, 1\n    v_mov_b32 v4, s90\n    v_mov_b32 v5, s92\n    v_mov_b32 v6, s96\n    v_mov_b32 v7, s98\n    v_mov_b32 v8, 0\n")%(wgs[i],L,L)
        if i<N-1:
            t+="    buffer_store_dwordx4 v[4:7], v8, s[84:87], 0 offen offset:%d\n"%(16*i)
        else:
            t+="    buffer_store_dwordx4 v[4:7], v8, s[80:83], 0 offen offset:%d\n"%(16*i)
            for j in range(N-1):
                t+="    buffer_load_dwordx4 v[12:15], v8, s[84:87], 0 offen offset:%d\n    s_waitcnt vmcnt(0)\n    buffer_store_dwordx4 v[12:15], v8, s[80:83], 0 offen offset:%d\n    s_waitcnt vmcnt(0)\n"%(16*j,16*j)
        return t+"%s:\n    s_endpgm\n"%L
    body=re.sub(r"    s_endpgm\n", rep, body)
    src=src[:a]+pre+body+src[b:]
src=re.sub(r"\.amdhsa_next_free_sgpr \d+", ".amdhsa_next_free_sgpr 100", src)
open(sys.argv[2],"w").write(src)
```

```python
import re, sys
src=open(sys.argv[1]).read(); outp=sys.argv[2]; ia=int(sys.argv[3]); ib=int(sys.argv[4]); K=5
names=re.findall(r"; @launch kernel=(\w+)", src)
N=len(names)
for i,nm in enumerate(names):
    head="%s:\n"%nm
    a=src.index(head)+len(head)
    pre=("    s_cmp_lg_u32 s2, 0\n    s_cbranch_scc1 LQ_%d\n    s_memrealtime s[90:91]\n    s_load_dwordx2 s[78:79], s[0:1], 104\n    s_waitcnt lgkmcnt(0)\n"
         "    s_add_u32 s84, s78, 0x1f00000\n    s_addc_u32 s85, s79, 0\n    s_mov_b32 s86, 64\n    s_mov_b32 s87, 0x20000\n"
         "    v_mov_b32 v1, s90\n    v_mov_b32 v2, 0\n    buffer_store_dword v1, v2, s[84:87], 0 offen offset:%d\nLQ_%d:\n")%(i,4*i,i)
    src=src[:a]+pre+src[a:]
last=[l for l in src.split("\n") if l.startswith("; @launch")][-1]
src=src.replace(last+"\n", last+"\n; @launch kernel=gm_z_kernel grid=(1,1,1) block=(64,1,1) lds=0\n")
z="""
.globl gm_z_kernel
.p2align 8
.type gm_z_kernel,@function
gm_z_kernel:
    s_cmp_lg_u32 s2, 0
    s_cbranch_scc1 LZ_end
    s_memrealtime s[20:21]
    s_load_dwordx2 s[4:5], s[0:1], 104
    s_waitcnt lgkmcnt(0)
    s_add_u32 s4, s4, 0x1f00000
    s_addc_u32 s5, s5, 0
    s_load_dwordx4 s[8:11], s[4:5], 0
    s_waitcnt lgkmcnt(0)
    s_mov_b32 s%d, s20
    s_sub_u32 s12, s%d, s%d
    s_min_u32 s12, s12, 5000
    s_mul_i32 s12, s12, %d
LZ_spin:
    s_memrealtime s[22:23]
    s_waitcnt lgkmcnt(0)
    s_sub_u32 s13, s22, s20
    s_cmp_lt_u32 s13, s12
    s_cbranch_scc1 LZ_spin
LZ_end:
    s_endpgm
""" % (8+N, 8+ib, 8+ia, K)
src=src.replace('.section .rodata,"a"', z+'.section .rodata,"a"')
src+=""".p2align 6
.amdhsa_kernel gm_z_kernel
  .amdhsa_next_free_vgpr 8
  .amdhsa_next_free_sgpr 32
  .amdhsa_accum_offset 8
  .amdhsa_group_segment_fixed_size 0
  .amdhsa_kernarg_size 112
  .amdhsa_user_sgpr_count 2
  .amdhsa_user_sgpr_kernarg_segment_ptr 1
  .amdhsa_system_sgpr_workgroup_id_x 1
.end_amdhsa_kernel
"""
src=re.sub(r"\.amdhsa_next_free_sgpr (\d+)", lambda m: ".amdhsa_next_free_sgpr %d"%max(int(m.group(1)),96), src)
open(outp,"w").write(src)
```
